```python
import torch

def _softmax(x, axis=-1):
    return torch.softmax(x, dim=axis)
def _gelu(x):
    return torch.nn.functional.gelu(x, approximate="tanh")
def _silu(x):
    return torch.nn.functional.silu(x)
def _sigmoid(x):
    return torch.sigmoid(x)
def _layernorm(x, axis=-1, eps=1e-5):
    m = x.mean(dim=axis, keepdim=True)
    v = x.var(dim=axis, keepdim=True, unbiased=False)
    return (x - m) / torch.sqrt(v + eps)
def _scatter_add(tgt, idx, src, axis=0):
    return tgt.clone().index_add_(axis, idx, src)
def _segment_sum(src, seg, n):
    out = torch.zeros((n,) + src.shape[1:], dtype=src.dtype)
    return out.index_add_(0, seg, src)
def _pad(x, pw):
    flat = tuple(v for pair in reversed(pw) for v in pair)
    return torch.nn.functional.pad(x, flat)

kernel_name = 'concat_heads__mha_block_cached__mha_block_cached__near_ridge'

def setup_inputs():

    _w = (lambda a: (lambda t: t.to(torch.bfloat16) if t.is_floating_point() else t)(torch.as_tensor(a)))
    def _A_setup():
        B, Sq, D = 16, 192, 512
        H, Sk, Dh = 32, 512, 128
        return {
            "x": _w((lambda *s: torch.randn(*s, dtype=torch.bfloat16) * 0.8)(B, Sq, D)),
            "k_cache": _w((lambda *s: torch.randn(*s, dtype=torch.bfloat16) * 0.8)(B, H, Sk, Dh)),
            "v_cache": _w((lambda *s: torch.randn(*s, dtype=torch.bfloat16) * 0.05)(B, H, Sk, Dh)),
            "wq": _w((lambda *s: torch.randn(*s, dtype=torch.bfloat16) * 0.8)(D, H * Dh) * (D ** -0.5)),
            "wo": _w((lambda *s: torch.randn(*s, dtype=torch.bfloat16) * 0.05)(H * Dh, D) * ((H * Dh) ** -0.5)),
        }
    _A_in = _A_setup()

    def _B_setup():
        B, Sq, D = 16, 192, 512
        H, Sk, Dh = 32, 512, 128
        return {
            "x": _w((lambda *s: torch.randn(*s, dtype=torch.bfloat16) * 0.8)(B, Sq, D)),
            "k_cache": _w((lambda *s: torch.randn(*s, dtype=torch.bfloat16) * 0.8)(B, H, Sk, Dh)),
            "v_cache": _w((lambda *s: torch.randn(*s, dtype=torch.bfloat16) * 0.05)(B, H, Sk, Dh)),
            "wq": _w((lambda *s: torch.randn(*s, dtype=torch.bfloat16) * 0.8)(D, H * Dh) * (D ** -0.5)),
            "wo": _w((lambda *s: torch.randn(*s, dtype=torch.bfloat16) * 0.05)(H * Dh, D) * ((H * Dh) ** -0.5)),
        }
    _B_in = _B_setup()

    return {
        "A_x": _A_in["x"],
        "A_k_cache": _A_in["k_cache"],
        "A_v_cache": _A_in["v_cache"],
        "A_wq": _A_in["wq"],
        "A_wo": _A_in["wo"],
        "B_x": _B_in["x"],
        "B_k_cache": _B_in["k_cache"],
        "B_v_cache": _B_in["v_cache"],
        "B_wq": _B_in["wq"],
        "B_wo": _B_in["wo"],
    }

def reference(A_x, A_k_cache, A_v_cache, A_wq, A_wo, B_x, B_k_cache, B_v_cache, B_wq, B_wo):
    def _A_ref(x, k_cache, v_cache, wq, wo):
        B, Sq, D = x.shape
        H, Dh = 32, 128
        q = (lambda x, *d: x.permute(*d))((x @ wq).reshape(B, Sq, H, Dh), 0, 2, 1, 3)
        scores = torch.einsum("bhqd,bhkd->bhqk", q, k_cache) * (Dh ** -0.5)
        p = _softmax(scores, axis=-1)
        o = torch.einsum("bhqk,bhkd->bhqd", p, v_cache)
        return (lambda x, *d: x.permute(*d))(o, 0, 2, 1, 3).reshape(B, Sq, H * Dh) @ wo

    def _B_ref(x, k_cache, v_cache, wq, wo):
        B, Sq, D = x.shape
        H, Dh = 32, 128
        q = (lambda x, *d: x.permute(*d))((x @ wq).reshape(B, Sq, H, Dh), 0, 2, 1, 3)
        scores = torch.einsum("bhqd,bhkd->bhqk", q, k_cache) * (Dh ** -0.5)
        p = _softmax(scores, axis=-1)
        o = torch.einsum("bhqk,bhkd->bhqd", p, v_cache)
        return (lambda x, *d: x.permute(*d))(o, 0, 2, 1, 3).reshape(B, Sq, H * Dh) @ wo

    a = _A_ref(A_x, A_k_cache, A_v_cache, A_wq, A_wo)
    b = _B_ref(B_x, B_k_cache, B_v_cache, B_wq, B_wo)
    return torch.concatenate([a, b], axis=-1)
```

```python
KNAME = "concat_heads__mha_block_cached__mha_block_cached__near_ridge_kernel"

def header(launch_lines, comment=""):
    s = ""
    for l in comment.splitlines():
        s += "; " + l + "\n"
    for l in launch_lines:
        s += "; @launch " + l + "\n"
    s += '.amdgcn_target "amdgcn-amd-amdhsa--gfx950"\n.text\n'
    return s

def kernel_begin(name):
    return f".globl {name}\n.p2align 8\n.type {name},@function\n{name}:\n"

def kernel_desc(name, vgpr=256, sgpr=102, accum=256, wgy=False):
    s = f'.section .rodata,"a"\n.p2align 6\n.amdhsa_kernel {name}\n'
    s += f"  .amdhsa_next_free_vgpr {vgpr}\n  .amdhsa_next_free_sgpr {sgpr}\n  .amdhsa_accum_offset {accum}\n"
    s += "  .amdhsa_group_segment_fixed_size 0\n  .amdhsa_kernarg_size 104\n  .amdhsa_user_sgpr_count 2\n"
    s += "  .amdhsa_user_sgpr_kernarg_segment_ptr 1\n  .amdhsa_system_sgpr_workgroup_id_x 1\n"
    if wgy:
        s += "  .amdhsa_system_sgpr_workgroup_id_y 1\n"
    s += "  .amdhsa_float_denorm_mode_32 3\n  .amdhsa_float_denorm_mode_16_64 3\n"
    s += ".end_amdhsa_kernel\n.text\n"
    return s

def srd(sd, sbase, nbytes):
    return [f"s_mov_b32 s{sd}, s{sbase}",
            f"s_and_b32 s{sd+1}, s{sbase+1}, 0xffff",
            f"s_mov_b32 s{sd+2}, 0x{nbytes:x}",
            f"s_mov_b32 s{sd+3}, 0x20000"]
```

```python
import re

def regs_of(tok):
    tok = tok.strip()
    m = re.fullmatch(r'(-|abs\()?([vas])\[(\d+):(\d+)\]\)?', tok)
    if m:
        return [(m.group(2), i) for i in range(int(m.group(3)), int(m.group(4)) + 1)]
    m = re.fullmatch(r'(-|abs\()?([vas])(\d+)\)?', tok)
    if m:
        return [(m.group(2), int(m.group(3)))]
    if tok in ('vcc', 'exec', 'm0', 'scc'):
        return [('x', tok)]
    return []

TRANS = ('v_exp_f32', 'v_log_f32', 'v_rcp_f32', 'v_rsq_f32', 'v_sqrt_f32', 'v_sin_f32', 'v_cos_f32')

class Emit:
    def __init__(self):
        self.lines = []
        self.ws = 0
        self.vm_seq = 0
        self.lg_seq = 0
        self.vm_done = 0
        self.lg_done = 0
        self.pend_vm = {}
        self.pend_lg = {}
        self.tags = {}
        self.mfma_w = {}
        self.mfma_c = {}
        self.valu_w = {}
        self.trans_w = {}
        self.sgpr_valu_w = {}
        self.m0_w = -100
        self.store_data = {}
        self.stats = {}
        self.nops = 0
    def raw(self, text):
        self.lines.append(text)
    def label(self, name):
        self.lines.append(name + ":")
    def comment(self, t):
        self.lines.append("; " + t)
    def _tick(self, text, n=1):
        self.lines.append("    " + text)
        self.ws += n
        k = text.split()[0]
        self.stats[k] = self.stats.get(k, 0) + 1
    def nop(self, n):
        while n > 0:
            k = min(n, 16)
            self._tick(f"s_nop {k-1}", k)
            self.nops += k
            n -= k
    def need(self, t_prev, dist):
        gap = self.ws - (t_prev + 1)
        if gap < dist:
            self.nop(dist - gap)
    def wait_vm_seq(self, seq):
        if seq < self.vm_done: return
        n = self.vm_seq - (seq + 1)
        assert n >= 0
        if n > 63:
            n = 63
        self._tick(f"s_waitcnt vmcnt({n})")
        self.vm_done = self.vm_seq - n
    def wait_lg_seq(self, seq):
        if seq < self.lg_done: return
        n = self.lg_seq - (seq + 1)
        if n > 15: n = 15
        self._tick(f"s_waitcnt lgkmcnt({n})")
        self.lg_done = self.lg_seq - n
    def wait_tag(self, tag):
        self.wait_vm_seq(self.tags[tag])
    def wait_vm_all(self):
        if self.vm_done < self.vm_seq:
            self._tick("s_waitcnt vmcnt(0)"); self.vm_done = self.vm_seq
    def wait_lg_all(self):
        if self.lg_done < self.lg_seq:
            self._tick("s_waitcnt lgkmcnt(0)"); self.lg_done = self.lg_seq
    def _resolve(self, regs):
        vs = [self.pend_vm[r] for r in regs if r in self.pend_vm and self.pend_vm[r] >= self.vm_done]
        ls = [self.pend_lg[r] for r in regs if r in self.pend_lg and self.pend_lg[r] >= self.lg_done]
        if vs: self.wait_vm_seq(max(vs))
        if ls: self.wait_lg_seq(max(ls))
    def ins(self, text, tag=None):
        text = text.strip()
        op = text.split()[0]
        args = text[len(op):].strip()
        toks = [t.strip() for t in re.split(r',\s*(?![^\[]*\])', args)] if args else []
        toks2 = []
        for t in toks:
            toks2.append(t.split()[0] if t else t)
        toks = toks2
        if op.startswith('v_mfma'):
            return self._mfma(text, toks)
        if op.startswith('ds_read') or op.startswith('ds_bpermute') or op.startswith('ds_swizzle'):
            return self._dsread(text, toks)
        if op.startswith('ds_write'):
            return self._dswrite(text, toks)
        if op.startswith('buffer_load'):
            return self._bload(text, toks, tag)
        if op.startswith('buffer_store'):
            return self._bstore(text, toks, tag)
        if op.startswith('v_'):
            return self._valu(text, op, toks)
        return self._salu(text, op, toks)
    def _vreads_check(self, regs, mfma=False):
        for r in regs:
            if r in self.mfma_w: self.need(self.mfma_w[r], 8)
    def _mfma(self, text, toks):
        d, a, b, c = regs_of(toks[0]), regs_of(toks[1]), regs_of(toks[2]), regs_of(toks[3])
        self._resolve(d + a + b + c)
        for r in a + b:
            if r in self.mfma_w: self.need(self.mfma_w[r], 8)
        for r in c:
            if r in self.mfma_w and not (c == d and self.mfma_lastd.get(r) == tuple(d)):
                self.need(self.mfma_w[r], 6)
        if c != d:
            for r in d:
                if r in self.mfma_w: self.need(self.mfma_w[r], 6)
        for r in a + b + c:
            if r in self.valu_w: self.need(self.valu_w[r], 2)
        t = self.ws
        self._tick(text)
        for r in d:
            self.mfma_w[r] = t; self.mfma_lastd[r] = tuple(d)
            self.valu_w.pop(r, None); self.trans_w.pop(r, None)
        for r in c: self.mfma_c[r] = t
    mfma_lastd = {}
    def _valu(self, text, op, toks):
        dst = regs_of(toks[0])
        srcs = []
        for t in toks[1:]: srcs += regs_of(t)
        if op in ('v_fmac_f32', 'v_pk_fmac_f32'): srcs += dst
        if op.startswith('v_permlane') and 'swap' in op:
            srcs = regs_of(toks[0]) + regs_of(toks[1]); dst = srcs[:]
        vs = [r for r in srcs if r[0] in 'va']
        vd = [r for r in dst if r[0] in 'va']
        self._resolve(vs + vd)
        for r in vs + vd:
            if r in self.mfma_w: self.need(self.mfma_w[r], 8)
        for r in vd:
            if r in self.mfma_c: self.need(self.mfma_c[r], 3)
            if r in self.store_data: self.need(self.store_data[r], 2)
        if op not in TRANS:
            for r in vs:
                if r in self.trans_w: self.need(self.trans_w[r], 1)
        if op.startswith('v_permlane'):
            for r in vs:
                if r in self.valu_w: self.need(self.valu_w[r], 2)
        if op.startswith('v_readfirstlane') or op.startswith('v_readlane'):
            for r in vs:
                if r in self.valu_w: self.need(self.valu_w[r], 1)
        if 'dpp' in text or 'row_' in text or 'quad_perm' in text:
            for r in vs:
                if r in self.valu_w: self.need(self.valu_w[r], 2)
        for r in srcs:
            if r[0] in 'sx' and r in self.sgpr_valu_w: self.need(self.sgpr_valu_w[r], 2)
        if op.startswith('v_cndmask') and len(toks) == 4:
            for r in regs_of(toks[3]):
                if r in self.sgpr_valu_w: self.need(self.sgpr_valu_w[r], 2)
        t = self.ws
        self._tick(text)
        for r in dst:
            if r[0] in 'va':
                self.valu_w[r] = t
                self.mfma_w.pop(r, None)
                if op in TRANS: self.trans_w[r] = t
                else: self.trans_w.pop(r, None)
            else:
                self.sgpr_valu_w[r] = t
        if op.startswith('v_cmp') and not dst:
            pass
    def _dsread(self, text, toks):
        dst = regs_of(toks[0]); addr = []
        for t in toks[1:]: addr += regs_of(t)
        self._resolve(dst + addr)
        for r in dst + addr:
            if r in self.mfma_w: self.need(self.mfma_w[r], 8)
        self._tick(text)
        for r in dst:
            self.pend_lg[r] = self.lg_seq; self.mfma_w.pop(r, None); self.valu_w.pop(r, None); self.trans_w.pop(r, None)
        self.lg_seq += 1
    def _dswrite(self, text, toks):
        rs = []
        for t in toks: rs += regs_of(t)
        self._resolve(rs)
        for r in rs:
            if r in self.mfma_w: self.need(self.mfma_w[r], 8)
        self._tick(text)
        self.lg_seq += 1
    def _vmem_sgpr(self, toks):
        for t in toks:
            for r in regs_of(t):
                if r[0] == 's' and r in self.sgpr_valu_w: self.need(self.sgpr_valu_w[r], 5)
    def _bload(self, text, toks, tag):
        lds = text.rstrip().endswith(' lds') or ' lds ' in text
        self._vmem_sgpr(toks)
        if lds:
            addr = regs_of(toks[0]); dst = []
            self.need(self.m0_w, 1)
        else:
            dst = regs_of(toks[0]); addr = regs_of(toks[1])
        self._resolve(dst + addr)
        for r in dst + addr:
            if r in self.mfma_w: self.need(self.mfma_w[r], 8)
        self._tick(text)
        for r in dst:
            self.pend_vm[r] = self.vm_seq; self.mfma_w.pop(r, None); self.valu_w.pop(r, None); self.trans_w.pop(r, None)
        if tag is not None: self.tags[tag] = self.vm_seq
        self.vm_seq += 1
    def _bstore(self, text, toks, tag):
        self._vmem_sgpr(toks)
        data = regs_of(toks[0]); addr = regs_of(toks[1])
        self._resolve(data + addr)
        for r in data + addr:
            if r in self.mfma_w: self.need(self.mfma_w[r], 8)
        t = self.ws
        self._tick(text)
        if len(data) >= 3:
            for r in data: self.store_data[r] = t
        if tag is not None: self.tags[tag] = self.vm_seq
        self.vm_seq += 1
    def _salu(self, text, op, toks):
        if op == 's_barrier' or op == 's_endpgm' or op.startswith('s_cbranch') or op == 's_branch' or op.startswith('s_setprio'):
            self._tick(text); return
        if op == 's_nop':
            n = int(toks[0]) + 1
            self._tick(text, n); return
        if op == 's_waitcnt':
            m = re.search(r'vmcnt\((\d+)\)', text)
            if m: self.vm_done = max(self.vm_done, self.vm_seq - int(m.group(1)))
            m = re.search(r'lgkmcnt\((\d+)\)', text)
            if m: self.lg_done = max(self.lg_done, self.lg_seq - int(m.group(1)))
            self._tick(text); return
        for t in toks[1:] if toks else []:
            for r in regs_of(t):
                if r in self.sgpr_valu_w: self.need(self.sgpr_valu_w[r], 4)
        if op.startswith('s_cmp') or op.startswith('s_bitcmp'):
            for t in toks:
                for r in regs_of(t):
                    if r in self.sgpr_valu_w: self.need(self.sgpr_valu_w[r], 4)
        t0 = self.ws
        self._tick(text)
        if toks and toks[0] == 'm0': self.m0_w = t0
        if toks:
            for r in regs_of(toks[0]):
                self.sgpr_valu_w.pop(r, None)
    def fence(self):
        self.nop(10)
        self.mfma_w.clear(); self.mfma_c.clear(); self.valu_w.clear(); self.trans_w.clear()
        self.sgpr_valu_w.clear(); self.store_data.clear()
    def text(self):
        return "\n".join(self.lines) + "\n"
```

```python
import sys, math
from asmlib import header, kernel_begin, kernel_desc
from emit import Emit

K1 = "mha_attn_kernel"
K2 = "mha_oproj_kernel"

def r4(x): return f"v[{x}:{x+3}]"
def r2(x): return f"v[{x}:{x+1}]"
def mf(d, a, b, c): return f"v_mfma_f32_16x16x32_bf16 {r4(d)}, {r4(a)}, {r4(b)}, {c}"

class Cfg:
    R = 8
    SLOT = 8256
    NT_KV = True
    THR = 0x53800000
    MAXISSUE = 2
    STAMP = False
cfg = Cfg()

vK, vV, vW, vDkv, vDw, vX, vO = 1, 2, 3, 4, 5, 6, 7
T0 = 8
F = lambda i: 16 + 4 * i
ONES = 48
P = lambda q: 52 + 4 * q
S = lambda kt, q: 64 + (q * 2 + kt) * 4
NM = lambda q: 88 + 4 * q
Q = lambda s, q: 100 + (s * 3 + q) * 4
LA = lambda q: 148 + 4 * q
O = lambda t, q: 160 + (t * 3 + q) * 4
XS = lambda ks, q: 52 + ((ks % 8) * 3 + q) * 4
sX, sWQ, sK, sV, sO = 4, 8, 12, 16, 20
sW, sMB, sMBW, sOFF, sQ1, sQ2 = 24, 25, 26, 27, 28, 29
sSLOW, sH, sCNT = 30, 31, 62
sC = 60
sO1, sO2 = 56, 57
FLAG = cfg.R * cfg.SLOT

def gen_attn():
    e = Emit()
    I = e.ins
    R, SLOT = cfg.R, cfg.SLOT
    flag_off = R * SLOT
    e.raw(kernel_begin(K1).rstrip("\n"))
    I("s_cmp_ge_u32 s2, 1024")
    I("s_cbranch_scc1 A_EXIT")
    I("s_load_dwordx8 s[32:39], s[0:1], 0")
    I("s_load_dwordx8 s[40:47], s[0:1], 40")
    I("s_load_dwordx2 s[48:49], s[0:1], 96")
    I("s_and_b32 s50, s2, 7")
    I("s_lshr_b32 s51, s2, 3")
    I("s_lshr_b32 s52, s50, 2")
    I("s_and_b32 s53, s50, 3")
    I("s_and_b32 s54, s51, 7")
    I("s_lshl_b32 s53, s53, 3")
    I(f"s_add_u32 s{sH}, s53, s54")
    I("s_lshr_b32 s54, s51, 3")
    I("v_lshrrev_b32 v8, 6, v0")
    I(f"v_readfirstlane_b32 s{sW}, v8")
    I("v_and_b32 v0, 63, v0")
    I("s_waitcnt lgkmcnt(0)")
    I("s_cmp_eq_u32 s52, 0")
    for k in range(4):
        I(f"s_cselect_b64 s[{32+2*k}:{33+2*k}], s[{32+2*k}:{33+2*k}], s[{40+2*k}:{41+2*k}]")
    def mk_srd(sd, sbase, soff, size_txt):
        I(f"s_add_u32 s{sd}, s{sbase}, s{soff}")
        I(f"s_addc_u32 s{sd+1}, s{sbase+1}, 0")
        I(f"s_and_b32 s{sd+1}, s{sd+1}, 0xffff")
        I(size_txt)
        I(f"s_mov_b32 s{sd+3}, 0x20000")
    I("s_mul_i32 s55, s54, 0x30000")
    mk_srd(sX, 32, 55, f"s_mov_b32 s{sX+2}, 0x30000")
    I(f"s_lshl_b32 s55, s{sH}, 8")
    mk_srd(sWQ, 38, 55, f"s_sub_u32 s{sWQ+2}, 0x400000, s55")
    I("s_lshl_b32 s55, s54, 5")
    I(f"s_add_u32 s55, s55, s{sH}")
    I("s_lshl_b32 s55, s55, 17")
    mk_srd(sK, 34, 55, f"s_mov_b32 s{sK+2}, 0x20000")
    mk_srd(sV, 36, 55, f"s_mov_b32 s{sV+2}, 0x20000")
    I("s_lshl_b32 s55, s52, 4")
    I("s_add_u32 s55, s55, s54")
    I("s_mul_i32 s55, s55, 0x180000")
    mk_srd(sO, 48, 55, f"s_mov_b32 s{sO+2}, 0x180000")
    I(f"s_lshl_b32 s{sMB}, s{sW}, 11")
    I(f"s_mul_i32 s{sMBW}, s{sW}, 2056")
    I(f"s_mov_b32 s{sQ1}, 16384")
    I(f"s_mov_b32 s{sQ2}, 32768")
    I(f"s_mov_b32 s{sO1}, 0x20000")
    I(f"s_mov_b32 s{sO2}, 0x40000")
    I(f"s_mov_b32 s{sSLOW}, 0")
    c = math.log2(math.e) / math.sqrt(128.0)
    import struct
    cb = struct.unpack("<I", struct.pack("<f", c))[0]
    I(f"s_mov_b32 s{sC}, 0x{cb:x}")
    I(f"s_mov_b32 s{sC+1}, 0x{cb:x}")
    I("v_and_b32 v8, 15, v0")
    I("v_lshrrev_b32 v9, 4, v0")
    I("v_bfe_u32 v10, v0, 2, 2")
    I("v_and_b32 v11, 3, v0")
    I(f"s_mul_i32 s55, s{sW}, 48")
    I("v_add_u32 v12, s55, v8")
    I("v_lshlrev_b32 v12, 10, v12")
    I(f"v_lshl_add_u32 v{vX}, v9, 4, v12")
    I("v_and_b32 v12, 1, v9")
    I("v_lshl_add_u32 v12, v12, 2, v10")
    I(f"s_lshl_b32 s55, s{sW}, 3")
    I("v_add_u32 v12, s55, v12")
    I("v_lshlrev_b32 v12, 13, v12")
    I("v_lshrrev_b32 v13, 5, v0")
    I("v_lshl_add_u32 v13, v13, 2, v11")
    I(f"v_lshl_add_u32 v{vDw}, v13, 4, v12")
    I("v_bfe_u32 v12, v0, 1, 3")
    I("v_add_u32 v12, s55, v12")
    I("v_lshlrev_b32 v12, 8, v12")
    I("v_lshl_add_u32 v12, v9, 5, v12")
    I("v_and_b32 v13, 1, v0")
    I(f"v_lshl_add_u32 v{vDkv}, v13, 4, v12")
    I("v_mul_u32_u24 v12, 2056, v9")
    I("v_lshl_add_u32 v12, v10, 6, v12")
    I(f"v_lshl_add_u32 v{vW}, v11, 4, v12")
    I("v_lshrrev_b32 v12, 3, v8")
    I("v_lshlrev_b32 v12, 11, v12")
    I("v_lshrrev_b32 v13, 1, v9")
    I("v_lshl_add_u32 v12, v13, 8, v12")
    I("v_and_b32 v14, 7, v8")
    I("v_lshl_add_u32 v12, v14, 5, v12")
    I("v_and_b32 v14, 1, v9")
    I(f"v_lshl_add_u32 v{vK}, v14, 4, v12")
    I("v_lshlrev_b32 v12, 11, v13")
    I("v_lshl_add_u32 v14, v14, 2, v10")
    I("v_lshl_add_u32 v12, v14, 5, v12")
    I(f"v_lshl_add_u32 v{vV}, v11, 3, v12")
    I(f"s_mul_i32 s55, s{sW}, 393216")
    I(f"s_lshl_b32 s58, s{sH}, 12")
    I("s_add_u32 s55, s55, s58")
    I("v_lshlrev_b32 v12, 4, v0")
    I(f"v_add_u32 v{vO}, s55, v12")
    for k in range(4):
        I(f"v_mov_b32 v{ONES+k}, 0x3f803f80")
    I("v_mov_b32 v12, 0")
    I(f"v_mov_b32 v13, {flag_off}")
    I("ds_write_b32 v13, v12")

    order = [('w', n) for n in range(16)] + [('K', 0), ('K', 1)]
    for j in range(14):
        order += [('V', j), ('K', j + 2)]
    order += [('V', 14), ('V', 15)]
    assert len(order) == 48
    idx_of = {s: n for n, s in enumerate(order)}
    slot_of = lambda s: (idx_of[s] % R) * SLOT
    st = dict(next=0)
    last_read = {}
    freed = set()
    nt = " nt" if cfg.NT_KV else ""

    def dma_instrs(s):
        kind, n = s
        sl = slot_of(s)
        if kind == 'w':
            return [f"s_add_u32 m0, s{sMBW}, {sl}", f"s_mov_b32 s{sOFF}, {n*262144}",
                    (f"buffer_load_dwordx4 v{vDw}, s[{sWQ}:{sWQ+3}], s{sOFF} offen lds", s),
                    f"s_add_u32 m0, s{sMBW}, {sl + 1024 - 128}",
                    (f"buffer_load_dwordx4 v{vDw}, s[{sWQ}:{sWQ+3}], s{sOFF} offen offset:128 lds", s)]
        srd = sK if kind == 'K' else sV
        return [f"s_add_u32 m0, s{sMB}, {sl}", f"s_mov_b32 s{sOFF}, {n*8192}",
                (f"buffer_load_dwordx4 v{vDkv}, s[{srd}:{srd+3}], s{sOFF} offen{nt} lds", s),
                f"s_add_u32 m0, s{sMB}, {sl + 1024 - 128}",
                (f"buffer_load_dwordx4 v{vDkv}, s[{srd}:{srd+3}], s{sOFF} offen offset:128{nt} lds", s)]
    def emit_item(x):
        if isinstance(x, tuple): I(x[0], tag=x[1])
        else: I(x)
    def issuable(limit):
        out = []
        while st['next'] < 48 and len(out) < limit:
            n = st['next']
            if n >= R and order[n - R] not in freed: break
            out.append(order[n]); st['next'] += 1
        return out
    def barrier(reads):
        for s in reads:
            assert idx_of[s] < st['next'], ("slab not yet issued", s)
        e.wait_vm_seq(max(e.tags[s] for s in reads))
        for s, q in last_read.items():
            if q < e.lg_done: freed.add(s)
        I("s_barrier")
    def rd(text, slab):
        I(text); last_read[slab] = e.lg_seq - 1

    def xload(ks, q):
        so = "0" if q == 0 else f"s{sQ1 if q == 1 else sQ2}"
        I(f"buffer_load_dwordx4 {r4(XS(ks, q))}, v{vX}, s[{sX}:{sX+3}], {so} offen offset:{ks*64}")
    def wreads(n, dt):
        sp, up = dt >> 1, dt & 1
        b = slot_of(('w', n)) + sp * 512 + 8 * up
        return [(f"ds_read_b64_tr_b16 {r2(F(dt))}, v{vW} offset:{b}", ('w', n)),
                (f"ds_read_b64_tr_b16 {r2(F(dt)+2)}, v{vW} offset:{b + 256}", ('w', n))]
    def kread(j, i):
        kt, s = i >> 2, i & 3
        return [(f"ds_read_b128 {r4(F(i))}, v{vK} offset:{slot_of(('K', j)) + kt*4096 + s*512}", ('K', j))]
    def vreads(j, t):
        b = slot_of(('V', j)) + t * 256
        return [(f"ds_read_b64_tr_b16 {r2(F(t))}, v{vV} offset:{b}", ('V', j)),
                (f"ds_read_b64_tr_b16 {r2(F(t)+2)}, v{vV} offset:{b + 4096}", ('V', j))]

    first = issuable(R)
    plan = []
    xq = [(ks, q) for ks in range(8) for q in range(3)]
    for k in range(8):
        for q in range(3): plan.append(('x', k, q))
        plan.append(('s', first[k]))
    for p in plan:
        if p[0] == 'x': xload(p[1], p[2])
        else:
            for x in dma_instrs(p[1]): emit_item(x)

    def run(backbone, attach):
        for x in attach.get(-1, []): emit_slot_item(x)
        for i, m in enumerate(backbone):
            I(m)
            for x in attach.get(i, []): emit_slot_item(x)
    def emit_slot_item(x):
        if isinstance(x, tuple) and len(x) == 2 and isinstance(x[1], tuple) and x[0].startswith('ds_read'):
            rd(x[0], x[1])
        elif isinstance(x, tuple) and x[0] == 'xload':
            xload(x[1], x[2])
        else:
            emit_item(x)
    def add(att, i, items):
        att.setdefault(i, []).extend(items)
    def spread_dma(att, start, slabs):
        pos = start
        for s in slabs:
            d = dma_instrs(s)
            add(att, pos, d[0:3]); add(att, pos + 1, d[3:5]); pos += 2

    for ep in range(8):
        reads = [('w', 2*ep + 1)] + ([('w', 2*ep + 2)] if ep < 7 else [('K', 0)])
        if ep == 0: reads = [('w', 0)] + reads
        e.wait_lg_all() if ep == 0 else None
        barrier(reads)
        new = issuable(cfg.MAXISSUE)
        if ep == 0:
            for dt in range(8):
                for x in wreads(0, dt): rd(x[0], x[1])
        for half in range(2):
            ks = 2 * ep + half
            bb = []; att = {}
            for dt in range(8):
                for q in range(3):
                    cc = "0" if ks == 0 else r4(O(dt, q))
                    bb.append(mf(O(dt, q), F(dt), XS(ks, q), cc))
                if ks < 15: add(att, dt * 3 + 2, wreads(ks + 1, dt))
                else: add(att, dt * 3 + 2, kread(0, dt))
            if half == 0: spread_dma(att, 0, new)
            if ks >= 1 and ks + 7 < 16:
                for q in range(3): add(att, 5 + q * 2, [('xload', ks + 7, q)])
            if ks == 15:
                for sp in range(4):
                    items = []
                    for q in range(3):
                        a, b = O(2*sp, q), O(2*sp + 1, q)
                        items += [f"v_pk_mul_f32 {r2(a)}, {r2(a)}, s[{sC}:{sC+1}]", f"v_pk_mul_f32 {r2(a+2)}, {r2(a+2)}, s[{sC}:{sC+1}]",
                                  f"v_pk_mul_f32 {r2(b)}, {r2(b)}, s[{sC}:{sC+1}]", f"v_pk_mul_f32 {r2(b+2)}, {r2(b+2)}, s[{sC}:{sC+1}]",
                                  f"v_cvt_pk_bf16_f32 v{Q(sp,q)}, v{a}, v{a+1}", f"v_cvt_pk_bf16_f32 v{Q(sp,q)+1}, v{a+2}, v{a+3}",
                                  f"v_cvt_pk_bf16_f32 v{Q(sp,q)+2}, v{b}, v{b+1}", f"v_cvt_pk_bf16_f32 v{Q(sp,q)+3}, v{b+2}, v{b+3}"]
                    base = (2*sp + 1) * 3 + 2 + 3
                    n = len(items)
                    if base <= 23:
                        span = min(6, 24 - base)
                        for k2, it in enumerate(items):
                            add(att, base + (k2 * span) // n, [it])
                    else:
                        add(att, 23, items)
            run(bb, att)

    def softmax_exps(q):
        return [f"v_exp_f32 v{S(kt,q)+r}, v{S(kt,q)+r}" for kt in range(2) for r in range(4)]
    def softmax_cvts(q):
        return [f"v_cvt_pk_bf16_f32 v{P(q)+2*kt+h}, v{S(kt,q)+2*h}, v{S(kt,q)+2*h+1}" for kt in range(2) for h in range(2)]
    def qk_bb(j):
        bb = []
        for q in range(3):
            for kt in range(2):
                for s in range(4):
                    cc = (r4(NM(q)) if j > 0 else "0") if s == 0 else r4(S(kt, q))
                    bb.append(mf(S(kt, q), F(kt*4 + s), Q(s, q), cc))
        return bb
    def pv_bb(j):
        bb = []
        for q in range(3):
            bb.append(mf(LA(q), ONES, P(q), "0" if j == 0 else r4(LA(q))))
            for t in range(8):
                bb.append(mf(O(t, q), F(t), P(q), "0" if j == 0 else r4(O(t, q))))
        return bb
    def xlane_max(reg, t1):
        I(f"v_mov_b32 v{t1}, v{reg}")
        I(f"v_permlane32_swap_b32 v{reg}, v{t1}")
        I(f"v_max_f32 v{reg}, v{reg}, v{t1}")
        I(f"v_mov_b32 v{t1}, v{reg}")
        I(f"v_permlane16_swap_b32 v{reg}, v{t1}")
        I(f"v_max_f32 v{reg}, v{reg}, v{t1}")

    e.label("A_ATT0")
    ATT0_NEXT[0] = st['next']
    barrier([('K', 1)])
    new = issuable(cfg.MAXISSUE)
    bb = qk_bb(0); att = {}
    spread_dma(att, 0, new)
    for i in range(8): add(att, 16 + i, kread(1, i))
    run(bb, att)
    I(f"s_cmp_lg_u32 s{sSLOW}, 0")
    I("s_cbranch_scc1 A_SKIPMAX")
    for q in range(3):
        a, b = S(0, q), S(1, q)
        t = T0 + q
        I(f"v_max3_f32 v{t}, v{a}, v{a+1}, v{a+2}")
        I(f"v_max3_f32 v{t}, v{t}, v{a+3}, v{b}")
        I(f"v_max3_f32 v{t}, v{t}, v{b+1}, v{b+2}")
        I(f"v_max_f32 v{t}, v{t}, v{b+3}")
    for q in range(3): xlane_max(T0 + q, T0 + 4 + q)
    for q in range(3):
        for r in range(4): I(f"v_sub_f32 v{NM(q)+r}, 0, v{T0+q}")
    e.label("A_SKIPMAX")
    e.nop(2)
    for q in range(3):
        for kt in range(2):
            for r in range(4): I(f"v_add_f32 v{S(kt,q)+r}, v{S(kt,q)+r}, v{NM(q)+r}")
    for q in range(3):
        for x in softmax_exps(q): I(x)
    for q in range(3):
        for x in softmax_cvts(q): I(x)

    carry = []
    for j in range(1, 16):
        e.comment(f"attention step {j}")
        reads = [('V', j-1)] + ([('K', j+1)] if j < 15 else [('V', 15)])
        barrier(reads)
        new = issuable(cfg.MAXISSUE)
        bb = qk_bb(j) + pv_bb(j-1); att = {}
        for k2, it in enumerate(carry): add(att, k2 // 2, [it])
        carry = []
        spread_dma(att, 2, new)
        for i in range(8): add(att, 16 + i, vreads(j-1, i))
        for q in range(3):
            for k2, it in enumerate(softmax_exps(q)): add(att, 9 + 8*q + k2, [it])
        for k2, it in enumerate(softmax_cvts(0)): add(att, 33 + k2, [it])
        for k2, it in enumerate(softmax_cvts(1)): add(att, 42 + k2, [it])
        carry = softmax_cvts(2)
        for t in range(8):
            add(att, 43 + t, kread(j+1, t) if j < 15 else vreads(15, t))
        run(bb, att)
    for it in carry: I(it)
    bb = pv_bb(15); att = {}
    tmpf = {0: [64, 68, 72, 76], 1: [80, 84, 88, 92], 2: [16, 20, 24, 28]}
    def o_epi(q):
        it = []
        inv = T0 + q
        it.append(f"v_rcp_f32 v{inv}, v{LA(q)}")
        it.append(f"v_cmp_nge_f32 vcc, 0x{cfg.THR:x}, v{LA(q)}")
        it.append(f"s_or_b64 s[58:59], s[58:59], vcc")
        for s in range(4):
            a, b = O(2*s, q), O(2*s+1, q)
            d = tmpf[q][s]
            for x in (a, b):
                for r in range(4): it.append(f"v_mul_f32 v{x+r}, v{x+r}, v{inv}")
            it += [f"v_cvt_pk_bf16_f32 v{d}, v{a}, v{a+1}", f"v_cvt_pk_bf16_f32 v{d+1}, v{a+2}, v{a+3}",
                   f"v_cvt_pk_bf16_f32 v{d+2}, v{b}, v{b+1}", f"v_cvt_pk_bf16_f32 v{d+3}, v{b+2}, v{b+3}"]
            so = "0" if q == 0 else f"s{sO1 if q == 1 else sO2}"
            it.append(f"buffer_store_dwordx4 {r4(d)}, v{vO}, s[{sO}:{sO+3}], {so} offen offset:{s*1024}")
        return it
    I("s_mov_b64 s[58:59], 0")
    for q in range(2):
        items = o_epi(q)
        base = 9 * (q + 1) + 2
        span = 8
        for k2, it in enumerate(items): add(att, min(26, base + (k2 * span) // len(items)), [it])
    run(bb, att)
    for it in o_epi(2): I(it)
    I("s_cmp_eq_u64 s[58:59], 0")
    I("s_cbranch_scc1 A_NOBAD")
    I("v_mov_b32 v8, 1")
    I(f"v_mov_b32 v9, {flag_off}")
    I("ds_write_b32 v9, v8")
    e.label("A_NOBAD")
    I("s_waitcnt lgkmcnt(0)")
    I("s_barrier")
    I(f"v_mov_b32 v9, {flag_off}")
    I("ds_read_b32 v8, v9")
    I("s_waitcnt lgkmcnt(0)")
    I("v_readfirstlane_b32 s55, v8")
    I(f"s_cmp_lg_u32 s{sSLOW}, 0")
    I("s_cbranch_scc1 A_EXIT")
    I("s_cmp_eq_u32 s55, 0")
    I("s_cbranch_scc1 A_EXIT")
    e.fence()
    I(f"s_mov_b32 s{sSLOW}, 1")
    I("s_waitcnt vmcnt(0)")
    for q in range(3): I(f"v_mov_b32 v{T0+q}, 0xff800000")
    I(f"s_mov_b32 s{sCNT}, 0")
    e.label("A_SLOWLOOP")
    I(f"s_mov_b32 m0, s{sMB}")
    I(f"s_lshl_b32 s{sOFF}, s{sCNT}, 13")
    I(f"buffer_load_dwordx4 v{vDkv}, s[{sK}:{sK+3}], s{sOFF} offen lds")
    I(f"s_add_u32 m0, s{sMB}, {1024-128}")
    I(f"buffer_load_dwordx4 v{vDkv}, s[{sK}:{sK+3}], s{sOFF} offen offset:128 lds")
    I("s_waitcnt vmcnt(0)")
    I("s_barrier")
    for i in range(8):
        I(f"ds_read_b128 {r4(F(i))}, v{vK} offset:{(i>>2)*4096 + (i&3)*512}")
    I("s_waitcnt lgkmcnt(0)")
    for m in qk_bb(0): I(m)
    e.nop(10)
    for q in range(3):
        a, b = S(0, q), S(1, q)
        t = T0 + q
        I(f"v_max3_f32 v{t}, v{t}, v{a}, v{a+1}")
        I(f"v_max3_f32 v{t}, v{t}, v{a+2}, v{a+3}")
        I(f"v_max3_f32 v{t}, v{t}, v{b}, v{b+1}")
        I(f"v_max3_f32 v{t}, v{t}, v{b+2}, v{b+3}")
    I("s_barrier")
    I(f"s_add_u32 s{sCNT}, s{sCNT}, 1")
    I(f"s_cmp_lt_u32 s{sCNT}, 16")
    I("s_cbranch_scc1 A_SLOWLOOP")
    e.fence()
    for q in range(3): xlane_max(T0 + q, T0 + 4 + q)
    for q in range(3):
        for r in range(4): I(f"v_sub_f32 v{NM(q)+r}, 0, v{T0+q}")
    n0 = idx_of[('K', 0)]
    for n in range(n0, ATT0_NEXT[0]):
        for x in dma_instrs(order[n]):
            I(x[0] if isinstance(x, tuple) else x)
    I("s_waitcnt vmcnt(0)")
    I("s_barrier")
    for i in range(8): I(kread(0, i)[0][0])
    I("s_waitcnt lgkmcnt(0)")
    e.fence()
    I("s_branch A_ATT0")
    e.label("A_EXIT")
    I("s_endpgm")
    return e

ATT0_NEXT = [None]

def gen_oproj():
    e = Emit()
    I = e.ins
    RS = 32
    D = 16
    vOr, vDo, vA, vSt = 1, 2, 3, 4
    WF = lambda buf, nt: 16 + buf * 16 + nt * 4
    ACC = lambda nt, q: 48 + (nt * 3 + q) * 4
    OF = lambda ks, q: ((ks % D) * 3 + q) * 4
    def a4(x): return f"a[{x}:{x+3}]"
    sOo, sWO, sOUT = 4, 8, 12
    sA = [24, 25, 26]; sB = 27; sMB2 = 28; sW2 = 29
    e.raw(kernel_begin(K2).rstrip("\n"))
    I("s_cmp_ge_u32 s2, 256")
    I("s_cbranch_scc1 B_EXIT")
    I("s_load_dwordx2 s[32:33], s[0:1], 32")
    I("s_load_dwordx2 s[34:35], s[0:1], 72")
    I("s_load_dwordx2 s[36:37], s[0:1], 80")
    I("s_load_dwordx2 s[38:39], s[0:1], 96")
    I("s_and_b32 s50, s2, 7")
    I("s_lshr_b32 s51, s2, 3")
    I("s_and_b32 s52, s51, 7")
    I("s_lshr_b32 s53, s51, 3")
    I("s_lshl_b32 s54, s50, 2")
    I("s_add_u32 s54, s54, s53")
    I("s_lshr_b32 s55, s54, 4")
    I("s_and_b32 s56, s54, 15")
    I("v_lshrrev_b32 v8, 6, v0")
    I(f"v_readfirstlane_b32 s{sW2}, v8")
    I("v_and_b32 v0, 63, v0")
    I("s_waitcnt lgkmcnt(0)")
    I("s_cmp_eq_u32 s55, 0")
    I("s_cselect_b64 s[32:33], s[32:33], s[34:35]")
    def mk_srd(sd, sbase, soff, size_txt):
        I(f"s_add_u32 s{sd}, s{sbase}, s{soff}")
        I(f"s_addc_u32 s{sd+1}, s{sbase+1}, 0")
        I(f"s_and_b32 s{sd+1}, s{sd+1}, 0xffff")
        I(size_txt)
        I(f"s_mov_b32 s{sd+3}, 0x20000")
    I("s_mul_i32 s57, s54, 0x180000")
    mk_srd(sOo, 38, 57, f"s_mov_b32 s{sOo+2}, 0x180000")
    I("s_lshl_b32 s57, s52, 7")
    mk_srd(sWO, 32, 57, f"s_sub_u32 s{sWO+2}, 0x400000, s57")
    I("s_lshl_b32 s58, s55, 10")
    I("s_add_u32 s58, s58, s57")
    I("s_mul_i32 s59, s56, 0x60000")
    I("s_add_u32 s59, s59, s58")
    mk_srd(sOUT, 36, 59, f"s_sub_u32 s{sOUT+2}, 0x60000, s58")
    I("v_and_b32 v8, 15, v0")
    I("v_lshrrev_b32 v9, 4, v0")
    I("v_bfe_u32 v10, v0, 2, 2")
    I("v_and_b32 v11, 3, v0")
    I(f"s_mul_i32 s57, s{sW2}, 393216")
    I("v_lshlrev_b32 v12, 4, v0")
    I(f"v_add_u32 v{vOr}, s57, v12")
    I(f"s_lshl_b32 s57, s{sW2}, 3")
    I("v_bfe_u32 v12, v0, 1, 3")
    I("v_add_u32 v12, s57, v12")
    I("v_lshlrev_b32 v12, 10, v12")
    I("v_lshl_add_u32 v12, v9, 5, v12")
    I("v_and_b32 v13, 1, v0")
    I(f"v_lshl_add_u32 v{vDo}, v13, 4, v12")
    I("v_lshrrev_b32 v13, 1, v9")
    I("v_lshlrev_b32 v12, 10, v13")
    I("v_and_b32 v14, 1, v9")
    I("v_lshl_add_u32 v14, v14, 2, v10")
    I("v_lshl_add_u32 v12, v14, 5, v12")
    I(f"v_lshl_add_u32 v{vA}, v11, 3, v12")
    I(f"v_add_u32 v5, 65536, v{vA}")
    I(f"s_mul_i32 s57, s{sW2}, 48")
    I("v_add_u32 v12, s57, v8")
    I("v_lshlrev_b32 v12, 11, v12")
    I(f"v_lshl_add_u32 v{vSt}, v9, 3, v12")
    I(f"s_lshl_b32 s{sMB2}, s{sW2}, 10")
    for q in range(3): I(f"s_mov_b32 s{40+q}, {q*131072}")
    NK = 128
    def oload(ks, q):
        I(f"buffer_load_dwordx4 {a4(OF(ks, q))}, v{vOr}, s[{sOo}:{sOo+3}], s{sA[q]} offen offset:{(ks % 4) * 1024}")
    cur = {'a': None}
    def set_a(ks):
        g4 = ks // 4
        if cur['a'] != g4:
            for q in range(3): I(f"s_mov_b32 s{sA[q]}, {q*131072 + g4*4096}")
            cur['a'] = g4
    def dma(n):
        I(f"s_add_u32 m0, s{sMB2}, {(n % RS) * 4096}")
        I(f"s_mov_b32 s{sB}, {n * 32768}")
        I(f"buffer_load_dwordx4 v{vDo}, s[{sWO}:{sWO+3}], s{sB} offen lds", tag=('wo', n))
    last_read = {}; freed = set(); st = dict(next=0)
    def areads(n, buf, nt):
        sl = (n % RS) * 4096
        base = vA if sl < 65536 else 5
        off = (sl % 65536) + nt * 256
        for u in range(2):
            I(f"ds_read_b64_tr_b16 {r2(WF(buf, nt) + 2*u)}, v{base} offset:{off + u*2048}")
            last_read[n] = e.lg_seq - 1
    for ks in range(D):
        set_a(ks)
        for q in range(3): oload(ks, q)
        for n in (2*ks, 2*ks + 1):
            if n < RS - 4:
                dma(n); st['next'] = n + 1
    EP = 4
    for ep in range(NK // EP):
        reads = list(range(ep*EP + 1, min(ep*EP + EP + 1, NK)))
        if ep == 0: reads = [0] + reads
        e.wait_vm_seq(max(e.tags[('wo', n)] for n in reads))
        for n, q in last_read.items():
            if q < e.lg_done: freed.add(n)
        I("s_barrier")
        if ep == 0:
            for nt in range(4): areads(0, 0, nt)
        new = []
        while st['next'] < NK and len(new) < EP and (st['next'] < RS or (st['next'] - RS) in freed):
            new.append(st['next']); st['next'] += 1
        for half in range(EP):
            ks = ep * EP + half
            buf = ks & 1
            k2 = 0
            for nt in range(4):
                for q in range(3):
                    cc = "0" if ks == 0 else r4(ACC(nt, q))
                    I(f"v_mfma_f32_16x16x32_bf16 {r4(ACC(nt,q))}, {r4(WF(buf,nt))}, {a4(OF(ks,q))}, {cc}")
                    k2 += 1
                    if q == 0 and ks + 1 < NK: areads(ks + 1, buf ^ 1, nt)
                    if nt == 1 and q == 1 and half < len(new): dma(new[half])
            if ks + D < NK:
                set_a(ks + D)
                for q in range(3): oload(ks + D, q)
    for q in range(3):
        for nt in range(4):
            a = ACC(nt, q)
            d = 16 + (q * 4 + nt) * 2
            I(f"v_cvt_pk_bf16_f32 v{d}, v{a}, v{a+1}")
            I(f"v_cvt_pk_bf16_f32 v{d+1}, v{a+2}, v{a+3}")
    for q in range(3):
        I(f"s_mov_b32 s40, {q*16*2048}")
        for nt in range(4):
            d = 16 + (q * 4 + nt) * 2
            I(f"buffer_store_dwordx2 {r2(d)}, v{vSt}, s[{sOUT}:{sOUT+3}], s40 offen offset:{nt*32}")
    e.label("B_EXIT")
    I("s_endpgm")
    return e

def build(path, only=None):
    e1 = gen_attn()
    e2 = gen_oproj()
    lds1 = cfg.R * cfg.SLOT + 64
    cm = open('concat_heads__mha_block_cached__mha_block_cached__near_ridge.s.ref').read().split("; Override")[0]
    s = cm
    s += f"; @launch kernel={K1} grid=(1024,1,1) block=(256,1,1) lds={lds1}\n"
    s += f"; @launch kernel={K2} grid=(256,1,1) block=(256,1,1) lds=131072\n"
    s += '.amdgcn_target "amdgcn-amd-amdhsa--gfx950"\n.text\n'
    s += e1.text()
    s += e2.text()
    s += kernel_desc(K1, 256, 96, 256)
    s += kernel_desc(K2, 320, 96, 128)
    open(path, "w").write(s)
    print("attn stats:", {k: v for k, v in sorted(e1.stats.items(), key=lambda x: -x[1])}, "nops", e1.nops)
    print("oproj stats:", {k: v for k, v in sorted(e2.stats.items(), key=lambda x: -x[1])}, "nops", e2.nops)

if __name__ == "__main__":
    build(sys.argv[1] if len(sys.argv) > 1 else "mha.s")
```
